```python
import torch

def _softmax(x, axis=-1):
    return torch.softmax(x, dim=axis)
def _gelu(x):
    return torch.nn.functional.gelu(x, approximate="tanh")
def _silu(x):
    return torch.nn.functional.silu(x)
def _sigmoid(x):
    return torch.sigmoid(x)
def _layernorm(x, axis=-1, eps=1e-5):
    m = x.mean(dim=axis, keepdim=True)
    v = x.var(dim=axis, keepdim=True, unbiased=False)
    return (x - m) / torch.sqrt(v + eps)
def _scatter_add(tgt, idx, src, axis=0):
    return tgt.clone().index_add_(axis, idx, src)
def _segment_sum(src, seg, n):
    out = torch.zeros((n,) + src.shape[1:], dtype=src.dtype)
    return out.index_add_(0, seg, src)
def _pad(x, pw):
    flat = tuple(v for pair in reversed(pw) for v in pair)
    return torch.nn.functional.pad(x, flat)

kernel_name = 'standalone__paged_block_table_kv_radixattention__sampling'

def setup_inputs():

    _w = (lambda a: (lambda t: t.to(torch.bfloat16) if t.is_floating_point() else t)(torch.as_tensor(a)))
    B, H, Hkv, Dh = 16, 32, 8, 128
    Lk = 4096
    bs = 16
    nb = max(2, Lk // bs)
    P = max(1, nb // 2)
    n_phys = P + B * (nb - P)
    shared = torch.arange(P, dtype=torch.int64)
    priv = P + torch.arange(B * (nb - P), dtype=torch.int64).reshape(B, nb - P)
    bt = torch.cat([torch.tile(shared[None, :], (B, 1)), priv], dim=1)
    ctx = nb * bs - (torch.arange(1, B + 1, dtype=torch.int64) * 2654435761) % max(1, (nb * bs - P * bs) // 2)
    return {
        "q": _w((lambda *s: torch.randn(*s, dtype=torch.bfloat16) * 0.8)(B, H, Dh)),
        "k_cache": _w((lambda *s: torch.randn(*s, dtype=torch.bfloat16) * 0.8)(n_phys, bs, Hkv, Dh)),
        "v_cache": _w((lambda *s: torch.randn(*s, dtype=torch.bfloat16) * 0.05)(n_phys, bs, Hkv, Dh)),
        "block_table": _w(bt.to(torch.int64)),
        "ctx_lens": _w(torch.as_tensor(ctx).to(torch.int64)),
    }

def reference(q, k_cache, v_cache, block_table, ctx_lens):
    B, H, Dh = q.shape
    n_phys, bs, Hkv, _ = k_cache.shape
    nb = block_table.shape[1]
    Lk = nb * bs
    rep = H // Hkv
    k = k_cache[block_table].reshape(B, Lk, Hkv, Dh)
    v = v_cache[block_table].reshape(B, Lk, Hkv, Dh)
    k = (lambda x, n, axis: torch.repeat_interleave(x, n, dim=axis))(k, rep, axis=2)
    v = (lambda x, n, axis: torch.repeat_interleave(x, n, dim=axis))(v, rep, axis=2)
    scores = torch.einsum("bhd,bkhd->bhk", q, k) * (Dh ** -0.5)
    pos = torch.arange(Lk)
    valid = pos[None, :] < ctx_lens[:, None]
    scores = torch.where(valid[:, None, :], scores, -1e9)
    p = _softmax(scores, axis=-1)
    return torch.einsum("bhk,bkhd->bhd", p, v)
```

```python
import sys, subprocess
NBLK=1639
KN="standalone__paged_block_table_kv_radixattention__sampling_kernel"
def kernel(N, LG, DESC=0, NST=0, WMASK=0, STRIDE=0, POL='', WHEN=0, BASE=0, PRE=0):
    o=[]; e=o.append; name=KN; R=16
    e(f".globl {name}\n.p2align 8\n.type {name},@function\n{name}:")
    e("s_memrealtime s[40:41]")
    e("s_cmp_ge_u32 s2, 256"); e("s_cbranch_scc1 L_end")
    e("s_load_dwordx4 s[4:7], s[0:1], 8"); e("s_load_dwordx2 s[20:21], s[0:1], 56")
    e("v_lshrrev_b32 v1, 6, v0"); e("s_nop 0"); e("v_readfirstlane_b32 s22, v1"); e("v_and_b32 v2, 63, v0")
    e("s_lshr_b32 s23, s2, 5"); e("s_and_b32 s24, s2, 31")
    if LG<0:
        e("s_mul_i32 s26, s24, 51"); e("s_sub_u32 s25, s22, 1"); e("s_mul_i32 s25, s25, 17"); e("s_add_u32 s26, s26, s25"); e("s_add_u32 s27, s26, 17"); STEP=1
    else:
        G=1<<LG
        e(f"s_lshr_b32 s25, s24, {LG}"); e(f"s_mul_i32 s26, s25, {51*G}"); e(f"s_add_u32 s27, s26, {51*G}")
        e(f"s_and_b32 s25, s24, {G-1}"); e("s_mul_i32 s25, s25, 3"); e("s_add_u32 s26, s26, s25")
        e("s_add_u32 s26, s26, s22"); e("s_sub_u32 s26, s26, 1"); STEP=3*G
    e("v_lshrrev_b32 v3, 4, v2"); e("v_and_b32 v4, 15, v2"); e("s_lshl_b32 s28, s23, 8")
    e("v_lshlrev_b32 v10, 13, v3"); e("v_lshl_add_u32 v10, v4, 4, v10"); e("v_add_u32 v10, s28, v10")
    for k in range(3): e(f"v_add_u32 v{11+k}, 2048, v{10+k}")
    e("v_mov_b32 v6, 0"); e("v_mov_b32 v7, 1"); e("ds_write_b32 v6, v6")
    e("s_waitcnt lgkmcnt(0)"); e("s_barrier")
    e("v_mov_b32 v8, 0")
    e("s_cmp_eq_u32 s22, 0"); e("s_cbranch_scc1 L_aux")
    e("s_mov_b32 s8, s4\ns_mov_b32 s9, s5\ns_mov_b32 s10, 0x4400000\ns_mov_b32 s11, 0x20000")
    e("s_mov_b32 s12, s6\ns_mov_b32 s13, s7\ns_mov_b32 s14, 0x4400000\ns_mov_b32 s15, 0x20000")
    e("s_lshl_b32 s26, s26, 15"); e("s_lshl_b32 s27, s27, 15")
    base=16
    def issue(i):
        slot=i%R; r=base+slot*4; s=i&3; kv=(i>>2)&1
        if i%8==0:
            e("s_cmp_lt_u32 s26, s27"); e("s_cselect_b32 s30, s26, 0x80000000"); e(f"s_add_u32 s26, s26, {STEP*32768}")
        e(f"buffer_load_dwordx4 v[{r}:{r+3}], v{10+s}, s[{8+4*kv}:{11+4*kv}], s30 offen nt")
    e("s_mov_b32 s31, s26")
    for i in range(N): issue(i)
    e("L_loop:")
    for i in range(0,R,2):
        e(f"s_waitcnt vmcnt({N-2})")
        r=base+i*4
        for k in range(8): e(f"v_xor_b32 v8, v8, v{r+k}")
        issue(i+N); issue(i+N+1)
        if i%8==6:
            e("s_mov_b64 exec, 1"); e("ds_add_u32 v6, v7"); e("s_mov_b64 exec, -1")
            e(f"s_add_u32 s31, s31, {STEP*32768}"); e("s_cmp_ge_u32 s31, s27"); e("s_cbranch_scc1 L_done")
    e("s_branch L_loop")
    e("L_aux:")
    if NST:
        e(f"s_and_b32 s34, s2, {WMASK}"); e("s_cmp_lg_u32 s34, 0"); e("s_cbranch_scc1 L_done")
        e(f"s_mul_i32 s34, s2, {STRIDE}"); e(f"s_add_u32 s34, s34, {BASE}"); e("v_lshl_add_u32 v12, v2, 4, s34")
        if PRE:
            e("v_mov_b32 v13, v12")
            for k in range(NST):
                e(f"global_load_dwordx4 v[20:23], v13, s[20:21] {PRE if PRE!='p' else ''}"); e("v_add_u32 v13, 1024, v13")
        e("L_w:"); e("s_sleep 4"); e("ds_read_b32 v15, v6"); e("s_waitcnt lgkmcnt(0)"); e("v_readfirstlane_b32 s38, v15")
        e(f"s_cmp_lt_u32 s38, {WHEN}"); e("s_cbranch_scc1 L_w")
        for k in range(NST):
            e(f"global_store_dwordx4 v12, v[16:19], s[20:21] {POL}"); e("v_add_u32 v12, 1024, v12")
        e("s_waitcnt vmcnt(0)")
    e("L_done:")
    e("s_memrealtime s[44:45]")
    e("s_waitcnt vmcnt(0) lgkmcnt(0)")
    e("s_lshl_b32 s32, s2, 2"); e("s_add_u32 s32, s32, s22"); e("s_lshl_b32 s32, s32, 6"); e("s_add_u32 s32, s32, 0x10000000")
    e("s_add_u32 s20, s20, s32\ns_addc_u32 s21, s21, 0")
    e("v_mov_b32 v10, s40\nv_mov_b32 v11, s41\nv_mov_b32 v12, s44\nv_mov_b32 v13, s45")
    e("v_mov_b32 v9, 0"); e("s_mov_b64 exec, 1")
    e("global_store_dwordx2 v9, v[10:11], s[20:21]"); e("global_store_dwordx2 v9, v[12:13], s[20:21] offset:56"); e("global_store_dword v9, v8, s[20:21] offset:16")
    e("L_end:"); e("s_endpgm")
    return '.amdgcn_target "amdgcn-amd-amdhsa--gfx950"\n.text\n'+"\n".join(o)+f"""
.section .rodata,"a"
.p2align 6
.amdhsa_kernel {name}
  .amdhsa_next_free_vgpr 264
  .amdhsa_next_free_sgpr 64
  .amdhsa_accum_offset 256
  .amdhsa_group_segment_fixed_size 0
  .amdhsa_kernarg_size 64
  .amdhsa_user_sgpr_count 2
  .amdhsa_user_sgpr_kernarg_segment_ptr 1
  .amdhsa_system_sgpr_workgroup_id_x 1
.end_amdhsa_kernel
.amdgpu_metadata
---
amdhsa.version: [1, 2]
amdhsa.kernels:
  - .name: {name}
    .symbol: {name}.kd
    .kernarg_segment_size: 64
    .kernarg_segment_align: 8
    .group_segment_fixed_size: 0
    .private_segment_fixed_size: 0
    .wavefront_size: 64
    .sgpr_count: 64
    .vgpr_count: 264
    .max_flat_workgroup_size: 256
    .args:
      - {{.name: kernargs, .size: 64, .offset: 0, .value_kind: by_value}}
...
.end_amdgpu_metadata
"""
names=[]
for c in eval(sys.argv[1]):
    n="w_"+"_".join(str(x).replace(" ","") for x in c)
    open(n+".s","w").write(kernel(*c))
    subprocess.check_call(["clang","-x","assembler","-target","amdgcn-amd-amdhsa","-mcpu=gfx950",n+".s","-o",n+".co"])
    names.append(n)
open("list.txt","w").write("\n".join(names)+"\n")
subprocess.run("rm -f pack.tar; tar cf pack.tar list.txt "+" ".join(x+".co" for x in names),shell=True)
```
